```python
import torch

def _softmax(x, axis=-1):
    return torch.softmax(x, dim=axis)

def _gelu(x):
    return torch.nn.functional.gelu(x, approximate='tanh')

def _silu(x):
    return torch.nn.functional.silu(x)

def _sigmoid(x):
    return torch.sigmoid(x)

def _layernorm(x, axis=-1, eps=1e-05):
    m = x.mean(dim=axis, keepdim=True)
    v = x.var(dim=axis, keepdim=True, unbiased=False)
    return (x - m) / torch.sqrt(v + eps)

def _scatter_add(tgt, idx, src, axis=0):
    return tgt.clone().index_add_(axis, idx, src)

def _segment_sum(src, seg, n):
    out = torch.zeros((n,) + src.shape[1:], dtype=src.dtype)
    return out.index_add_(0, seg, src)

def _pad(x, pw):
    flat = tuple((v for pair in reversed(pw) for v in pair))
    return torch.nn.functional.pad(x, flat)
kernel_name = 'standalone__tree_speculative_verify_tree_attention_over_candidate_token_tree__decode'

def setup_inputs():

    _w = lambda a: (lambda t: t.to(torch.bfloat16) if t.is_floating_point() else t)(torch.as_tensor(a))
    B, Hq, Hkv, T, C, D = (2, 32, 16, 1, 32768, 128)
    tree_mask = torch.zeros((B, T, T), dtype=float)
    for b in range(B):
        parent = torch.zeros(T, dtype=torch.int64)
        for i in range(1, T):
            parent[i] = int(torch.randint(0, i, (1,)).item())
        for i in range(T):
            j = i
            tree_mask[b, i, j] = 1.0
            while j > 0:
                j = parent[j]
                tree_mask[b, i, j] = 1.0
    return {'q': _w((lambda *s: torch.randn(*s, dtype=torch.bfloat16) * 0.8)(B, Hq, T, D)), 'k_cache': _w((lambda *s: torch.randn(*s, dtype=torch.bfloat16) * 0.8)(B, Hkv, C, D)), 'v_cache': _w((lambda *s: torch.randn(*s, dtype=torch.bfloat16) * 0.05)(B, Hkv, C, D)), 'k_tree': _w((lambda *s: torch.randn(*s, dtype=torch.bfloat16) * 0.8)(B, Hkv, T, D)), 'v_tree': _w((lambda *s: torch.randn(*s, dtype=torch.bfloat16) * 0.05)(B, Hkv, T, D)), 'tree_mask': _w(tree_mask)}

def reference(q, k_cache, v_cache, k_tree, v_tree, tree_mask):
    B, Hq, T, D = q.shape
    Hkv, C = (k_cache.shape[1], k_cache.shape[2])
    rep = Hq // Hkv
    kc = (lambda x, n, axis: torch.repeat_interleave(x, n, dim=axis))(k_cache, rep, axis=1)
    vc = (lambda x, n, axis: torch.repeat_interleave(x, n, dim=axis))(v_cache, rep, axis=1)
    kt = (lambda x, n, axis: torch.repeat_interleave(x, n, dim=axis))(k_tree, rep, axis=1)
    vt = (lambda x, n, axis: torch.repeat_interleave(x, n, dim=axis))(v_tree, rep, axis=1)
    k = torch.concatenate([kc, kt], axis=2)
    v = torch.concatenate([vc, vt], axis=2)
    scale = D ** (-0.5)
    scores = torch.einsum('bhqd,bhkd->bhqk', q, k) * scale
    ctx_mask = torch.ones((B, 1, T, C), dtype=scores.dtype)
    tm = tree_mask[:, None, :, :].clone()
    full_mask = torch.concatenate([ctx_mask, tm], axis=-1)
    scores = scores + (1.0 - full_mask) * -1000000000.0
    p = _softmax(scores, axis=-1)
    return torch.einsum('bhqk,bhkd->bhqd', p, v)
```

```python
import argparse
import math
import struct

NAME = "standalone__tree_speculative_verify_tree_attention_over_candidate_token_tree__decode"
HEADER = """; Kernarg layout for this problem (72 bytes, ptrs only, base s[0:1]):
"""

NBH = 32
CTX = 32768
ROWB = 256
HEADB = CTX * ROWB
LOG2E = math.log2(math.e)
SCALE = 128 ** -0.5


def f2u(x):
    return struct.unpack("<I", struct.pack("<f", x))[0]


class Asm:
    def __init__(self):
        self.lines = []

    def __call__(self, s=""):
        self.lines.append("    " + s if s and not s.endswith(":") else s)

    def c(self, s):
        self.lines.append("    ; " + s)

    def text(self):
        return "\n".join(self.lines) + "\n"


def vr(base, n=4):
    return f"v[{base}:{base + n - 1}]"


def gen(W=8, NSPLIT=8, T=8, flags="nt", mapping="blk", interleave=False, stamp=False,
        vgpr_alloc=None, nocompute=False):
    NWG = NBH * NSPLIT
    keys_wg = CTX // NSPLIT
    tile_keys = W * 4 * T
    NITER = keys_wg // tile_keys
    assert NITER * tile_keys == keys_wg and NITER >= 1
    tile_bytes = tile_keys * ROWB
    NSO = (T + 3) // 4
    INFL = 2 * T
    assert INFL - 1 <= 63
    step_bytes = tile_bytes * (NSPLIT if interleave else 1)
    SLOT = 2048
    fl = (" " + flags) if flags else ""

    vK = 4
    vV = vK + 4 * T
    vS = vV + 4 * T
    vQ = vS + 4 * T
    vM = vQ + 4
    vO = vM + 4
    vm = vO + 4
    vl = vm + 1
    vc = vl + 1
    vu = vc + 1
    vx = vu + 1
    va = vx + 1
    voffK = va + 1
    voffV = voffK + 1
    vlane = voffV + 1
    nv = vlane + 1
    need_tail = 4 + max(6 * W, 6 * NSPLIT)
    assert need_tail <= vQ or True
    nv = max(nv, 0)

    sK = 24
    sV = 28
    sT = 32
    sSO = 36
    sBH = 44
    sSP = 45
    sWV = 46
    sIT = 47
    sT0 = 48
    sT1 = 50

    a = Asm()
    a(f"s_cmp_ge_u32 s2, {NWG}")
    a("s_cbranch_scc1 L_end")
    a("s_load_dwordx16 s[4:19], s[0:1], 0")
    a("s_load_dwordx2 s[20:21], s[0:1], 64")
    if stamp:
        a(f"s_memrealtime s[{sT0}:{sT0 + 1}]")
    if mapping == "blk":
        a(f"s_lshr_b32 s{sBH}, s2, {int(math.log2(NSPLIT))}")
        a(f"s_and_b32 s{sSP}, s2, {NSPLIT - 1}")
    else:
        a(f"s_and_b32 s{sBH}, s2, {NBH - 1}")
        a(f"s_lshr_b32 s{sSP}, s2, 5")
    a(f"v_and_b32 v{vlane}, 63, v0")
    a("v_lshrrev_b32 v1, 6, v0")
    a(f"v_lshlrev_b32 v{voffV}, 4, v{vlane}")
    a(f"v_readfirstlane_b32 s{sWV}, v1")
    a.c("K lane offset: key a=(l>>2)&3 -> a*256, g=l>>4 -> g*64, b=l&3 -> b*16")
    a(f"v_bfe_u32 v2, v{vlane}, 2, 2")
    a(f"v_lshrrev_b32 v3, 4, v{vlane}")
    a(f"v_and_b32 v{vu}, 3, v{vlane}")
    a(f"v_lshlrev_b32 v{vu}, 4, v{vu}")
    a(f"v_lshl_add_u32 v{vu}, v3, 6, v{vu}")
    a(f"v_lshl_add_u32 v{voffK}, v2, 8, v{vu}")
    a(f"v_mul_u32_u24 v1, {T * 1024}, v1")
    a(f"v_add_u32 v{voffK}, v{voffK}, v1")
    a(f"v_add_u32 v{voffV}, v{voffV}, v1")
    a.c("q lane offset: head h=(l>>3)&1 -> h*256, plus g*64 + b*16")
    a(f"v_bfe_u32 v2, v{vlane}, 3, 1")
    a(f"v_lshl_add_u32 v{vx}, v2, 8, v{vu}")
    a(f"s_lshl_b32 s22, s{sBH}, 23")
    if interleave:
        a(f"s_mul_i32 s23, s{sSP}, {tile_bytes}")
        nrec = HEADB - (NSPLIT - 1) * tile_bytes
    else:
        a(f"s_mul_i32 s23, s{sSP}, {keys_wg * ROWB}")
        nrec = keys_wg * ROWB
    a("s_add_u32 s22, s22, s23")
    a(f"s_lshl_b32 s23, s{sBH}, 9")
    for i in range(NSO):
        a(f"s_mov_b32 s{sSO + i}, {i * 4096}")
    a("s_waitcnt lgkmcnt(0)")
    a.c("q descriptor (two heads, 512 bytes)")
    a(f"s_add_u32 s{sT}, s4, s23")
    a(f"s_addc_u32 s{sT + 1}, s5, 0")
    a(f"s_mov_b32 s{sT + 2}, 512")
    a(f"s_mov_b32 s{sT + 3}, 0x20000")
    a(f"s_add_u32 s{sK}, s6, s22")
    a(f"s_addc_u32 s{sK + 1}, s7, 0")
    a(f"s_mov_b32 s{sK + 2}, {nrec}")
    a(f"s_mov_b32 s{sK + 3}, 0x20000")
    a(f"buffer_load_dwordx4 {vr(vQ)}, v{vx}, s[{sT}:{sT + 3}], 0 offen")
    a(f"s_add_u32 s{sV}, s8, s22")
    a(f"s_addc_u32 s{sV + 1}, s9, 0")
    a(f"s_mov_b32 s{sV + 2}, {nrec}")
    a(f"s_mov_b32 s{sV + 3}, 0x20000")

    def ldK(t):
        a(f"buffer_load_dwordx4 {vr(vK + 4 * t)}, v{voffK}, s[{sK}:{sK + 3}], s{sSO + t // 4} offen offset:{(t % 4) * 1024}{fl}")

    def ldV(t):
        a(f"buffer_load_dwordx4 {vr(vV + 4 * t)}, v{voffV}, s[{sV}:{sV + 3}], s{sSO + t // 4} offen offset:{(t % 4) * 1024}{fl}")

    for t in range(T):
        ldK(t)
    for t in range(T):
        ldV(t)

    a.c("P-operand masks: register r holds k-elements 2r,2r+1; lane keeps element e=l&7")
    a(f"v_and_b32 v1, 1, v{vlane}")
    a("v_lshlrev_b32 v1, 4, v1")
    a("v_mov_b32 v2, 0xffff")
    a("v_lshlrev_b32 v1, v1, v2")
    a(f"v_bfe_u32 v2, v{vlane}, 1, 2")
    for r in range(4):
        a(f"v_cmp_eq_u32 vcc, {r}, v2")
        a("s_nop 1")
        a(f"v_cndmask_b32 v{vM + r}, 0, v1, vcc")
    a(f"v_mov_b32 v{vc}, 0x{f2u(SCALE * LOG2E):08x}")
    a(f"v_mov_b32 v{vm}, 0xff800000")
    a(f"v_mov_b32 v{vl}, 0")
    for r in range(4):
        a(f"v_mov_b32 v{vO + r}, 0")

    a.c("tree token: folded into the initial state of wave 0 of split 0")
    a(f"s_or_b32 s23, s{sSP}, s{sWV}")
    a("s_cmp_lg_u32 s23, 0")
    a("s_cbranch_scc1 L_notree")
    a(f"s_lshl_b32 s23, s{sBH}, 8")
    a(f"s_add_u32 s{sT}, s10, s23")
    a(f"s_addc_u32 s{sT + 1}, s11, 0")
    a(f"s_mov_b32 s{sT + 2}, 256")
    a(f"s_mov_b32 s{sT + 3}, 0x20000")
    a(f"buffer_load_dwordx4 {vr(vS)}, v{vu}, s[{sT}:{sT + 3}], 0 offen")
    a("s_load_dword s22, s[14:15], 0")
    a(f"v_and_b32 v1, 15, v{vlane}")
    a("v_lshlrev_b32 v1, 4, v1")
    a(f"s_add_u32 s{sT}, s12, s23")
    a(f"s_addc_u32 s{sT + 1}, s13, 0")
    a(f"buffer_load_dwordx4 {vr(vS + 4)}, v1, s[{sT}:{sT + 3}], 0 offen")
    a("s_waitcnt lgkmcnt(0)")
    a(f"s_lshr_b32 s23, s{sBH}, 4")
    a("s_lshl_b32 s23, s23, 4")
    a("s_lshr_b32 s22, s22, s23")
    a("s_lshl_b32 s22, s22, 16")
    a("v_mov_b32 v1, s22")
    a("v_sub_f32 v1, 1.0, v1")
    a(f"v_mul_f32 v1, 0x{f2u(-1e9 * LOG2E):08x}, v1")
    a("v_mov_b32 v2, 0x3e803e80")
    for r in range(4):
        a(f"v_and_b32 v{vS + 12 + r}, v2, v{vM + r}")
    a("s_waitcnt vmcnt(0)")
    a(f"v_mfma_f32_16x16x32_bf16 {vr(vS + 8)}, {vr(vS)}, {vr(vQ)}, 0")
    a(f"v_mfma_f32_16x16x32_bf16 {vr(vO)}, {vr(vS + 4)}, {vr(vS + 12)}, 0")
    a("s_nop 7")
    for r in range(4):
        a(f"v_fmac_f32_dpp v1, v{vS + 8 + r}, v{vc} quad_perm:[{r},{r},{r},{r}] row_mask:0xf bank_mask:0xf")
        a("s_nop 1")
    a(f"v_mov_b32 v{vm}, v1")
    a(f"v_mov_b32 v{vl}, 0x3e800000")
    a("L_notree:")

    def tile(prefetch):
        if prefetch:
            for i in range(NSO):
                a(f"s_add_u32 s{sSO + i}, s{sSO + i}, {step_bytes}")
        left = INFL
        for t in range(T):
            a(f"s_waitcnt vmcnt({left - 1})")
            if not nocompute:
                a(f"v_mfma_f32_16x16x32_bf16 {vr(vS + 4 * t)}, {vr(vK + 4 * t)}, {vr(vQ)}, 0")
            if prefetch:
                ldK(t)
            else:
                left -= 1
        if not nocompute:
            gap = (T - 1) + (1 if prefetch else 0)
            a(f"s_nop {max(8 - gap, 1)}")
            for t in range(T):
                a(f"v_mul_f32_dpp v{vS + 4 * t}, v{vS + 4 * t}, v{vc} quad_perm:[0,0,0,0] row_mask:0xf bank_mask:0xf")
            for r in range(1, 4):
                for t in range(T):
                    a(f"v_fmac_f32_dpp v{vS + 4 * t}, v{vS + 4 * t + r}, v{vc} quad_perm:[{r},{r},{r},{r}] row_mask:0xf bank_mask:0xf")
            srcs = [f"v{vm}"] + [f"v{vS + 4 * t}" for t in range(T)]
            cur = srcs.pop(0)
            while srcs:
                if len(srcs) >= 2:
                    a(f"v_max3_f32 v{vx}, {cur}, {srcs[0]}, {srcs[1]}")
                    srcs = srcs[2:]
                else:
                    a(f"v_max_f32 v{vx}, {cur}, {srcs[0]}")
                    srcs = srcs[1:]
                cur = f"v{vx}"
            a(f"v_mov_b32 v{vu}, v{vx}")
            a("s_nop 1")
            a(f"v_permlane16_swap_b32 v{vu}, v{vx}")
            a(f"v_max_f32 v{vx}, v{vx}, v{vu}")
            a(f"v_mov_b32 v{vu}, v{vx}")
            a("s_nop 1")
            a(f"v_permlane32_swap_b32 v{vu}, v{vx}")
            a(f"v_max_f32 v{vx}, v{vx}, v{vu}")
            a(f"v_sub_f32 v{va}, v{vm}, v{vx}")
            a(f"v_mov_b32 v{vm}, v{vx}")
            a(f"v_exp_f32 v{va}, v{va}")
            for t in range(T):
                a(f"v_sub_f32 v{vS + 4 * t}, v{vS + 4 * t}, v{vx}")
            for t in range(T):
                a(f"v_exp_f32 v{vS + 4 * t}, v{vS + 4 * t}")
            a(f"v_mul_f32 v{vl}, v{vl}, v{va}")
            for r in range(4):
                a(f"v_mul_f32 v{vO + r}, v{vO + r}, v{va}")
            for t in range(T):
                a(f"v_add_f32 v{vl}, v{vl}, v{vS + 4 * t}")
                a(f"v_cvt_pk_bf16_f32 v{vS + 4 * t}, v{vS + 4 * t}, v{vS + 4 * t}")
                for r in (1, 2, 3, 0):
                    a(f"v_and_b32 v{vS + 4 * t + r}, v{vS + 4 * t}, v{vM + r}")
            a("s_nop 0")
        for t in range(T):
            a(f"s_waitcnt vmcnt({left - 1})")
            if not nocompute:
                a(f"v_mfma_f32_16x16x32_bf16 {vr(vO)}, {vr(vV + 4 * t)}, {vr(vS + 4 * t)}, {vr(vO)}")
            if prefetch:
                ldV(t)
            else:
                left -= 1

    if NITER > 1:
        a(f"s_mov_b32 s{sIT}, {NITER - 1}")
        a("L_loop:")
        tile(True)
        a(f"s_sub_u32 s{sIT}, s{sIT}, 1")
        a(f"s_cmp_lg_u32 s{sIT}, 0")
        a("s_cbranch_scc1 L_loop")
    tile(False)

    if stamp:
        a(f"s_memrealtime s[{sT1}:{sT1 + 1}]")

    a.c("sum l over the four key groups")
    a(f"v_mov_b32 v{vu}, v{vl}")
    a("s_nop 1")
    a(f"v_permlane16_swap_b32 v{vu}, v{vl}")
    a(f"v_add_f32 v{vl}, v{vl}, v{vu}")
    a(f"v_mov_b32 v{vu}, v{vl}")
    a("s_nop 1")
    a(f"v_permlane32_swap_b32 v{vu}, v{vl}")
    a(f"v_add_f32 v{vl}, v{vl}, v{vu}")

    assert vm % 2 == 0 and vl == vm + 1
    base = 4

    def merge(n):
        ms = [f"v{base + 6 * i + 4}" for i in range(n)]
        cur = ms.pop(0)
        if not ms:
            a(f"v_mov_b32 v{vm}, {cur}")
        while ms:
            if len(ms) >= 2:
                a(f"v_max3_f32 v{vm}, {cur}, {ms[0]}, {ms[1]}")
                ms = ms[2:]
            else:
                a(f"v_max_f32 v{vm}, {cur}, {ms[0]}")
                ms = ms[1:]
            cur = f"v{vm}"
        for i in range(n):
            a(f"v_sub_f32 v{base + 6 * i + 4}, v{base + 6 * i + 4}, v{vm}")
        for i in range(n):
            a(f"v_exp_f32 v{base + 6 * i + 4}, v{base + 6 * i + 4}")
        a("s_nop 0")
        for i in range(n):
            w = base + 6 * i + 4
            for r in range(4):
                if i == 0:
                    a(f"v_mul_f32 v{vO + r}, v{w}, v{base + 6 * i + r}")
                else:
                    a(f"v_fmac_f32 v{vO + r}, v{w}, v{base + 6 * i + r}")
            if i == 0:
                a(f"v_mul_f32 v{vl}, v{w}, v{base + 6 * i + 5}")
            else:
                a(f"v_fmac_f32 v{vl}, v{w}, v{base + 6 * i + 5}")

    assert base + 6 * max(W, NSPLIT) <= vQ, "merge staging overlaps live registers"

    lds = 0
    if W > 1:
        lds = W * 1536
        a.c("workgroup merge through LDS")
        a(f"v_lshlrev_b32 v1, 4, v0")
        a(f"v_lshlrev_b32 v2, 3, v0")
        a(f"ds_write_b128 v1, {vr(vO)}")
        a(f"ds_write_b64 v2, v[{vm}:{vl}] offset:{W * 1024}")
        a("s_waitcnt lgkmcnt(0)")
        a("s_barrier")
        a(f"s_cmp_lg_u32 s{sWV}, 0")
        a("s_cbranch_scc1 L_end")
        for i in range(W):
            a(f"ds_read_b128 {vr(base + 6 * i)}, v1 offset:{i * 1024}")
            a(f"ds_read_b64 v[{base + 6 * i + 4}:{base + 6 * i + 5}], v2 offset:{W * 1024 + i * 512}")
        a("s_waitcnt lgkmcnt(0)")
        merge(W)
    else:
        a(f"v_lshlrev_b32 v1, 4, v0")
        a(f"v_lshlrev_b32 v2, 3, v0")

    a.c("publish the partial state (write-through), then take a ticket on this head's counter")
    a(f"s_mul_i32 s22, s{sBH}, {NSPLIT * SLOT}")
    a(f"s_add_u32 s{sT}, s20, s22")
    a(f"s_addc_u32 s{sT + 1}, s21, 0")
    a(f"s_mov_b32 s{sT + 2}, {NSPLIT * SLOT}")
    a(f"s_mov_b32 s{sT + 3}, 0x20000")
    a(f"s_mul_i32 s22, s{sSP}, {SLOT}")
    a(f"buffer_store_dwordx4 {vr(vO)}, v1, s[{sT}:{sT + 3}], s22 offen sc1")
    a(f"buffer_store_dwordx2 v[{vm}:{vl}], v2, s[{sT}:{sT + 3}], s22 offen offset:1024 sc1")
    a(f"s_lshl_b32 s23, s{sBH}, 2")
    a("v_mov_b32 v3, s23")
    a(f"v_mov_b32 v{vu}, 1")
    a("s_waitcnt vmcnt(0)")
    a("s_mov_b64 exec, 1")
    a(f"global_atomic_add v{vx}, v3, v{vu}, s[18:19] sc0")
    a("s_waitcnt vmcnt(0)")
    a("s_mov_b64 exec, -1")
    a(f"v_readfirstlane_b32 s23, v{vx}")
    a("s_nop 3")
    a(f"s_cmp_lg_u32 s23, {NSPLIT - 1}")
    if stamp:
        a("s_cbranch_scc1 L_stamp")
    else:
        a("s_cbranch_scc1 L_end")
    for i in range(NSPLIT):
        a(f"s_mov_b32 s22, {i * SLOT}")
        a(f"buffer_load_dwordx4 {vr(base + 6 * i)}, v1, s[{sT}:{sT + 3}], s22 offen sc1")
        a(f"buffer_load_dwordx2 v[{base + 6 * i + 4}:{base + 6 * i + 5}], v2, s[{sT}:{sT + 3}], s22 offen offset:1024 sc1")
    a.c("output offset: head*256 + (l>>4)*64 + (l&7)*2, rows r at +16")
    a(f"v_bfe_u32 v1, v{vlane}, 3, 1")
    a(f"v_lshrrev_b32 v2, 4, v{vlane}")
    a(f"v_and_b32 v3, 7, v{vlane}")
    a("v_lshlrev_b32 v3, 1, v3")
    a("v_lshl_add_u32 v3, v2, 6, v3")
    a("v_lshl_add_u32 v3, v1, 8, v3")
    a(f"s_lshl_b32 s22, s{sBH}, 9")
    a(f"s_add_u32 s{sK}, s16, s22")
    a(f"s_addc_u32 s{sK + 1}, s17, 0")
    a(f"s_mov_b32 s{sK + 2}, 512")
    a(f"s_mov_b32 s{sK + 3}, 0x20000")
    a("s_waitcnt vmcnt(0)")
    merge(NSPLIT)
    a(f"v_rcp_f32 v{vl}, v{vl}")
    a("s_nop 0")
    for r in range(4):
        a(f"v_mul_f32 v{vO + r}, v{vO + r}, v{vl}")
    for r in range(4):
        a(f"v_cvt_pk_bf16_f32 v{vO + r}, v{vO + r}, v{vO + r}")
    for r in range(4):
        a(f"buffer_store_short v{vO + r}, v3, s[{sK}:{sK + 3}], 0 offen offset:{16 * r}")
    if stamp:
        a("L_stamp:")
        a("s_waitcnt vmcnt(0)")
        a("s_memrealtime s[52:53]")
        a("s_getreg_b32 s54, hwreg(HW_REG_XCC_ID)")
        a("s_getreg_b32 s55, hwreg(HW_REG_HW_ID)")
        a("s_waitcnt lgkmcnt(0)")
        a("s_lshl_b32 s22, s2, 5")
        a("s_add_u32 s22, s22, 0x1000000")
        a("v_mov_b32 v1, s22")
        for i in range(8):
            a(f"v_mov_b32 v{4 + i}, s{48 + i}")
        a("s_mov_b64 exec, 1")
        a("global_store_dwordx4 v1, v[4:7], s[20:21]")
        a("global_store_dwordx4 v1, v[8:11], s[20:21] offset:16")
    a("L_end:")
    a("s_endpgm")

    nvg = vgpr_alloc if vgpr_alloc else nv
    assert nvg >= nv
    acc = (nvg + 3) // 4 * 4
    out = HEADER
    out += f"; @launch grid=({NWG},1,1) block=({W * 64},1,1) lds={lds}\n"
    out += f'.amdgcn_target "amdgcn-amd-amdhsa--gfx950"\n.text\n.globl {NAME}_kernel\n.p2align 8\n'
    out += f".type {NAME}_kernel,@function\n{NAME}_kernel:\n"
    out += a.text()
    out += f""".section .rodata,"a"
.p2align 6
.amdhsa_kernel {NAME}_kernel
  .amdhsa_next_free_vgpr {nvg}
  .amdhsa_next_free_sgpr 64
  .amdhsa_accum_offset {acc}
  .amdhsa_group_segment_fixed_size 0
  .amdhsa_kernarg_size 72
  .amdhsa_user_sgpr_count 2
  .amdhsa_user_sgpr_kernarg_segment_ptr 1
  .amdhsa_system_sgpr_workgroup_id_x 1
  .amdhsa_float_denorm_mode_32 3
.end_amdhsa_kernel
"""
    return out


if __name__ == "__main__":
    p = argparse.ArgumentParser()
    p.add_argument("-W", type=int, default=8)
    p.add_argument("-S", type=int, default=8)
    p.add_argument("-T", type=int, default=8)
    p.add_argument("--flags", default="nt")
    p.add_argument("--mapping", default="blk")
    p.add_argument("--interleave", action="store_true")
    p.add_argument("--stamp", action="store_true")
    p.add_argument("--nocompute", action="store_true")
    p.add_argument("--vgpr", type=int, default=None)
    p.add_argument("-o", default="/dev/stdout")
    x = p.parse_args()
    open(x.o, "w").write(gen(x.W, x.S, x.T, x.flags, x.mapping, x.interleave, x.stamp, x.vgpr, x.nocompute))
```
